```python
import torch

def _softmax(x, axis=-1):
    return torch.softmax(x, dim=axis)
def _gelu(x):
    return torch.nn.functional.gelu(x, approximate="tanh")
def _silu(x):
    return torch.nn.functional.silu(x)
def _sigmoid(x):
    return torch.sigmoid(x)
def _layernorm(x, axis=-1, eps=1e-5):
    m = x.mean(dim=axis, keepdim=True)
    v = x.var(dim=axis, keepdim=True, unbiased=False)
    return (x - m) / torch.sqrt(v + eps)
def _scatter_add(tgt, idx, src, axis=0):
    return tgt.clone().index_add_(axis, idx, src)
def _segment_sum(src, seg, n):
    out = torch.zeros((n,) + src.shape[1:], dtype=src.dtype)
    return out.index_add_(0, seg, src)
def _pad(x, pw):
    flat = tuple(v for pair in reversed(pw) for v in pair)
    return torch.nn.functional.pad(x, flat)

kernel_name = 'concat_heads__mha_block_cached__gqa_block_cached__near_ridge'

def setup_inputs():

    _w = (lambda a: (lambda t: t.to(torch.bfloat16) if t.is_floating_point() else t)(torch.as_tensor(a)))
    def _A_setup():
        B, Sq, D = 8, 224, 512
        H, Sk, Dh = 32, 512, 128
        return {
            "x": _w((lambda *s: torch.randn(*s, dtype=torch.bfloat16) * 0.8)(B, Sq, D)),
            "k_cache": _w((lambda *s: torch.randn(*s, dtype=torch.bfloat16) * 0.8)(B, H, Sk, Dh)),
            "v_cache": _w((lambda *s: torch.randn(*s, dtype=torch.bfloat16) * 0.05)(B, H, Sk, Dh)),
            "wq": _w((lambda *s: torch.randn(*s, dtype=torch.bfloat16) * 0.8)(D, H * Dh) * (D ** -0.5)),
            "wo": _w((lambda *s: torch.randn(*s, dtype=torch.bfloat16) * 0.05)(H * Dh, D) * ((H * Dh) ** -0.5)),
        }
    _A_in = _A_setup()

    def _B_setup():
        B, Sq, D = 8, 224, 512
        Hq, Hkv, Sk, Dh = 32, 32, 512, 128
        assert Hq % Hkv == 0, (Hq, Hkv)
        return {
            "x": _w((lambda *s: torch.randn(*s, dtype=torch.bfloat16) * 0.8)(B, Sq, D)),
            "k_cache": _w((lambda *s: torch.randn(*s, dtype=torch.bfloat16) * 0.8)(B, Hkv, Sk, Dh)),
            "v_cache": _w((lambda *s: torch.randn(*s, dtype=torch.bfloat16) * 0.05)(B, Hkv, Sk, Dh)),
            "wq": _w((lambda *s: torch.randn(*s, dtype=torch.bfloat16) * 0.8)(D, Hq * Dh) * (D ** -0.5)),
            "wo": _w((lambda *s: torch.randn(*s, dtype=torch.bfloat16) * 0.05)(Hq * Dh, D) * ((Hq * Dh) ** -0.5)),
        }
    _B_in = _B_setup()

    return {
        "A_x": _A_in["x"],
        "A_k_cache": _A_in["k_cache"],
        "A_v_cache": _A_in["v_cache"],
        "A_wq": _A_in["wq"],
        "A_wo": _A_in["wo"],
        "B_x": _B_in["x"],
        "B_k_cache": _B_in["k_cache"],
        "B_v_cache": _B_in["v_cache"],
        "B_wq": _B_in["wq"],
        "B_wo": _B_in["wo"],
    }

def reference(A_x, A_k_cache, A_v_cache, A_wq, A_wo, B_x, B_k_cache, B_v_cache, B_wq, B_wo):
    def _A_ref(x, k_cache, v_cache, wq, wo):
        B, Sq, D = x.shape
        H, Dh = 32, 128
        q = (lambda x, *d: x.permute(*d))((x @ wq).reshape(B, Sq, H, Dh), 0, 2, 1, 3)
        scores = torch.einsum("bhqd,bhkd->bhqk", q, k_cache) * (Dh ** -0.5)
        p = _softmax(scores, axis=-1)
        o = torch.einsum("bhqk,bhkd->bhqd", p, v_cache)
        return (lambda x, *d: x.permute(*d))(o, 0, 2, 1, 3).reshape(B, Sq, H * Dh) @ wo

    def _B_ref(x, k_cache, v_cache, wq, wo):
        B, Sq, D = x.shape
        Hq, Dh = 32, 128
        Hkv = k_cache.shape[1]
        rep = Hq // Hkv
        q = (lambda x, *d: x.permute(*d))((x @ wq).reshape(B, Sq, Hq, Dh), 0, 2, 1, 3)
        k = (lambda x, n, axis: torch.repeat_interleave(x, n, dim=axis))(k_cache, rep, axis=1)
        v = (lambda x, n, axis: torch.repeat_interleave(x, n, dim=axis))(v_cache, rep, axis=1)
        scores = torch.einsum("bhqd,bhkd->bhqk", q, k) * (Dh ** -0.5)
        p = _softmax(scores, axis=-1)
        o = torch.einsum("bhqk,bhkd->bhqd", p, v)
        return (lambda x, *d: x.permute(*d))(o, 0, 2, 1, 3).reshape(B, Sq, Hq * Dh) @ wo

    a = _A_ref(A_x, A_k_cache, A_v_cache, A_wq, A_wo)
    b = _B_ref(B_x, B_k_cache, B_v_cache, B_wq, B_wo)
    return torch.concatenate([a, b], axis=-1)
```

```python
import re

TRANS = ("v_exp_f32", "v_log_f32", "v_rcp_f32", "v_rsq_f32", "v_sqrt_f32", "v_sin_f32", "v_cos_f32")

_reg = re.compile(r"\b([vsa])(\d+)\b|\b([vsa])\[(\d+):(\d+)\]")


def regs_of(tok):
    out = []
    for m in _reg.finditer(tok):
        if m.group(1):
            out.append((m.group(1), int(m.group(2))))
        else:
            out += [(m.group(3), i) for i in range(int(m.group(4)), int(m.group(5)) + 1)]
    if re.search(r"\bvcc\b", tok):
        out.append(("s", "vcc"))
    if re.search(r"\bm0\b", tok):
        out.append(("s", "m0"))
    if re.search(r"\bexec\b", tok):
        out.append(("s", "exec"))
    return out


def split_ops(s):
    ops, depth, cur = [], 0, ""
    for ch in s:
        if ch in "[(":
            depth += 1
        if ch in "])":
            depth -= 1
        if ch == "," and depth == 0:
            ops.append(cur.strip())
            cur = ""
        else:
            cur += ch
    if cur.strip():
        ops.append(cur.strip())
    return ops


class Ins:
    def __init__(self, text):
        self.text = text
        t = text.split(";")[0].strip()
        self.label = t.endswith(":")
        self.directive = t.startswith(".")
        self.empty = t == ""
        self.op = t.split()[0] if t else ""
        rest = t[len(self.op):].strip()
        self.ops = split_ops(rest) if rest else []
        op = self.op
        self.mfma = op.startswith("v_mfma")
        self.valu = op.startswith("v_") and not self.mfma
        self.trans = op in TRANS
        self.ds = op.startswith("ds_")
        self.vmem = op.startswith("buffer_") or op.startswith("global_")
        self.salu = op.startswith("s_")
        self.w, self.r = [], []
        self.srcc = []
        self.storedata = []
        o = self.ops
        if self.label or self.directive or self.empty:
            return
        if self.mfma:
            self.w = regs_of(o[0])
            self.r = regs_of(o[1]) + regs_of(o[2]) + regs_of(o[3])
            self.ab = regs_of(o[1]) + regs_of(o[2])
            self.srcc = regs_of(o[3])
            self.passes = 8 if "32x32x16" in op else 4
        elif self.valu:
            if op.startswith("v_cmp"):
                self.w = regs_of(o[0])
                self.r = sum((regs_of(x) for x in o[1:]), [])
            elif "permlane" in op and "swap" in op:
                self.w = regs_of(o[0]) + regs_of(o[1])
                self.r = list(self.w)
            elif op in ("v_add_co_u32", "v_addc_co_u32", "v_sub_co_u32"):
                self.w = regs_of(o[0]) + regs_of(o[1])
                self.r = sum((regs_of(x) for x in o[2:]), [])
            else:
                self.w = regs_of(o[0])
                self.r = sum((regs_of(x) for x in o[1:]), [])
                if op.startswith("v_fmac") or op.startswith("v_dot2c"):
                    self.r += self.w
        elif self.ds:
            if op.startswith("ds_read") or op.startswith("ds_bpermute") or op.startswith("ds_swizzle"):
                self.w = regs_of(o[0])
                self.r = sum((regs_of(x.split()[0]) for x in o[1:]), [])
            else:
                self.r = sum((regs_of(x.split()[0]) for x in o), [])
        elif self.vmem:
            lds = re.search(r"\blds\b", t) is not None
            self.ldsdma = lds
            if "load" in op and not lds:
                self.w = regs_of(o[0])
                self.r = sum((regs_of(x.split()[0]) for x in o[1:]), [])
            else:
                self.r = sum((regs_of(x.split()[0]) for x in o), [])
                if lds:
                    self.r.append(("s", "m0"))
                elif "x4" in op or "x3" in op:
                    self.storedata = regs_of(o[0]) if op.startswith("buffer") else regs_of(o[1])
        elif self.salu:
            if op in ("s_waitcnt", "s_nop", "s_barrier", "s_setprio", "s_endpgm", "s_branch", "s_sleep") or op.startswith("s_cbranch"):
                pass
            elif op.startswith("s_cmp") or op.startswith("s_bitcmp"):
                self.r = sum((regs_of(x) for x in o), [])
            else:
                self.w = regs_of(o[0])
                self.r = sum((regs_of(x) for x in o[1:]), [])

    def states(self):
        if self.label or self.directive or self.empty:
            return 0
        if self.op == "s_nop":
            return int(self.ops[0], 0) + 1
        return 1


def need(p, c):
    n = 0
    pw, cr, cw = set(p.w), set(c.r), set(c.w)
    if p.valu:
        vw = {x for x in pw if x[0] in "va"}
        sw = {x for x in pw if x[0] == "s"}
        if c.mfma and vw & cr:
            n = max(n, 2)
        if p.trans and c.valu and not c.trans and vw & cr:
            n = max(n, 1)
        if c.valu and "permlane" in c.op and vw & cr:
            n = max(n, 2)
        if c.valu and ("dpp" in c.op or "row_" in c.text) and vw & cr:
            n = max(n, 2)
        if c.op in ("v_readfirstlane_b32", "v_readlane_b32") and vw & cr:
            n = max(n, 1)
        if sw & cr:
            if c.valu:
                n = max(n, 2)
            if c.vmem:
                n = max(n, 5)
            if c.salu:
                n = max(n, 1)
        if ("s", "exec") in sw:
            if c.mfma or c.valu:
                n = max(n, 5)
    if p.mfma:
        big = {4: 8, 8: 12}[p.passes]
        ovl = {4: 6, 8: 10}[p.passes]
        war = {4: 3, 8: 7}[p.passes]
        if c.mfma:
            if pw & set(c.ab):
                n = max(n, big)
            if pw & set(c.srcc):
                if not (p.w == c.srcc and p.passes == c.passes):
                    n = max(n, ovl)
        elif c.valu or c.ds or c.vmem:
            if pw & (cr | cw):
                n = max(n, big)
            if c.valu and set(p.srcc) & cw:
                n = max(n, war)
    if p.salu and ("s", "m0") in pw and c.vmem and getattr(c, "ldsdma", False):
        n = max(n, 1)
    if p.vmem and p.storedata and set(p.storedata) & cw:
        n = max(n, 2 if c.valu else 1)
    return n


class Asm:
    def __init__(self):
        self.lines = []

    def e(self, s):
        for l in s.split("\n"):
            self.lines.append(l.strip())

    def text(self):
        return "\n".join(self.lines)


def fix_hazards(lines, loops=(), verbose=False, name=""):
    ins = [Ins(l) for l in lines]
    out = []
    inserted = 0
    W = 14

    def required(c, hist):
        worst = 0
        dist = 0
        for p in reversed(hist):
            if dist >= W:
                break
            n = need(p, c)
            if n > dist:
                worst = max(worst, n - dist)
            dist += p.states()
        return worst

    for c in ins:
        if c.states():
            k = required(c, out)
            if k:
                inserted += k
                if verbose:
                    print(f"[{name}] nop {k} before: {c.text}")
                while k > 0:
                    m = min(k, 16)
                    out.append(Ins(f"s_nop {m-1}"))
                    k -= m
        out.append(c)
    labels = {i.text.split(":")[0].strip(): n for n, i in enumerate(out) if i.label}
    for n, i in enumerate(out):
        if i.op.startswith("s_cbranch") or i.op == "s_branch":
            tgt = i.ops[0]
            if tgt in labels:
                hist = out[: n + 1]
                seq = out[labels[tgt]: labels[tgt] + 40]
                h = list(hist[-40:])
                for c in seq:
                    if c.states():
                        k = required(c, h)
                        if k:
                            raise SystemExit(f"[{name}] hazard across branch to {tgt}: needs {k} more before {c.text}")
                    h.append(c)
    return [i.text for i in out], inserted


class Q:
    def __init__(self, cap):
        self.q = []
        self.cap = cap

    def issue(self, tag):
        self.q.append(tag)

    def count_for(self, tags):
        tags = set(tags) if not isinstance(tags, (str, tuple)) else {tags}
        idx = [i for i, t in enumerate(self.q) if t in tags]
        if not idx:
            return None
        n = len(self.q) - 1 - max(idx)
        n = min(n, self.cap)
        self.q = self.q[len(self.q) - n:] if n else []
        return n
```

```python
import sys, math, struct, argparse
sys.path.insert(0, "gen")
from asmlib import Asm, fix_hazards, Q

K1 = "attn_kernel"
K2 = "oproj_kernel"

HEADER = open("concat_heads__mha_block_cached__gqa_block_cached__near_ridge.s.ref").read().split("; Override launch")[0]


def f32bits(x):
    return struct.unpack("<I", struct.pack("<f", x))[0]


def vr(a, n=4):
    return f"v[{a}:{a+n-1}]" if n > 1 else f"v{a}"


class Opt:
    stamps = False
    kb = 4
    ybar = 12
    prio_y = 0
    prio_x = 0
    stnt = False


O = Opt()

XSLOT = [32768, 98304]
WSLOT = [65536, 81920, 131072, 147456]
STAGE = 32768

S_W = 3
SRD_X, SRD_WQ, SRD_KV, SRD_O = 4, 8, 12, 16
S_T0, S_T1, S_T2, S_T3 = 20, 21, 22, 23
S_KVOFF, S_KVOFF2, S_KVM0 = 24, 25, 26
S_CNT, S_DELTA, S_STG = 27, 28, 29
S_C = 30
S_XM0, S_WM0 = 32, 33
S_HSEL, S_Q0 = 34, 35
S_OOFF = 36
S_STGC = 37
S_STAMP = 40


def srd(n):
    return f"s[{n}:{n+3}]"


class Role:
    def __init__(self, nct, name):
        self.nct = nct
        self.name = name
        n = nct
        self.ACC = 0
        self.QF = 32 * n
        self.S = self.QF + 16 * n
        self.F = self.S + 8 * n
        self.nF = (248 - self.F) // 4
        self.L = 248
        self.AK, self.AVE, self.AVO, self.DKV = 252, 253, 254, 255
        self.WB = [128, 160]
        self.XB = [192, 208]
        self.AX = [224, 225]
        self.AW = [[226, 227], [228, 229]]
        self.DX, self.DW = 230, 231

    def acc(self, dt, ct):
        return self.ACC + (dt * self.nct + ct) * 4

    def qf(self, ds, ct):
        return self.QF + (ds * self.nct + ct) * 4

    def s(self, kt, ct):
        return self.S + ct * 8 + kt * 4


stamp_n = [0]


def stamp(a, idx):
    if O.stamps:
        a.e(f"s_memtime s[{S_STAMP+2*idx}:{S_STAMP+2*idx+1}]")


def mfma(d, A, B, c=None):
    cc = vr(d) if c is None else c
    return f"v_mfma_f32_16x16x32_bf16 {vr(d)}, {vr(A)}, {vr(B)}, {cc}"


def dma_x(R, pair, vm):
    out = []
    base_blk = 4 if R.nct == 4 else 0
    for i in range(4):
        blk0 = base_blk + 8 * i
        if blk0 >= 28:
            continue
        g = [f"s_add_u32 m0, s{S_XM0}, {XSLOT[pair & 1] + blk0*1024}",
             f"s_mov_b32 s{S_T0}, {blk0*8192 + pair*128}",
             f"buffer_load_dwordx4 v{R.DX}, {srd(SRD_X)}, s{S_T0} offen lds"]
        out.append((g, ("x", pair)))
    return out


def dma_w(R, ks, vm):
    out = []
    for i in range(2):
        g = [f"s_add_u32 m0, s{S_WM0}, {WSLOT[ks & 3] + i*1024}",
             f"s_mov_b32 s{S_T1}, {ks*262144 + i*32768}",
             f"buffer_load_dwordx4 v{R.DW}, {srd(SRD_WQ)}, s{S_T1} offen lds"]
        out.append((g, ("w", ks)))
    return out


def dma_kv(R, tag):
    step = 1024 if R.nct == 4 else 2048
    nt = " nt" if O.stnt else ""
    out = []
    out.append(([f"s_mov_b32 m0, s{S_KVM0}",
                 f"s_add_u32 s{S_KVOFF2}, s{S_KVOFF}, 4096",
                 f"buffer_load_dwordx4 v{R.DKV}, {srd(SRD_KV)}, s{S_KVOFF} offen{nt} lds"], tag))
    out.append(([f"buffer_load_dwordx4 v{R.DKV}, {srd(SRD_KV)}, s{S_KVOFF} offen offset:{step}{nt} lds"], tag))
    out.append(([f"s_add_u32 m0, s{S_KVM0}, 4096",
                 f"s_add_u32 s{S_KVOFF}, s{S_KVOFF}, 8192",
                 f"buffer_load_dwordx4 v{R.DKV}, {srd(SRD_KV)}, s{S_KVOFF2} offen{nt} lds"], tag))
    out.append(([f"buffer_load_dwordx4 v{R.DKV}, {srd(SRD_KV)}, s{S_KVOFF2} offen offset:{step}{nt} lds",
                 f"s_add_u32 s{S_KVM0}, s{S_KVM0}, {STAGE}",
                 f"s_and_b32 s{S_KVM0}, s{S_KVM0}, 0x1ffff"], tag))
    return out


def emit_group(a, g, vm):
    lines, tag = g
    for l in lines:
        a.e(l)
    vm.issue(tag)


def qproj(a, R, vm):
    n = R.nct
    for g in dma_x(R, 0, vm) + dma_w(R, 0, vm) + dma_w(R, 1, vm) + dma_x(R, 1, vm) + dma_w(R, 2, vm) + dma_w(R, 3, vm) + dma_kv(R, ("kv", 0)):
        emit_group(a, g, vm)
    c = vm.count_for({("x", 0), ("w", 0)})
    a.e(f"s_waitcnt vmcnt({c})")
    a.e("s_barrier")
    stamp(a, 1)
    for ks in range(17):
        reads = []
        if ks < 16:
            bf = ks & 1
            pair = ks >> 1
            xs = XSLOT[pair & 1]
            win = xs >> 16
            for ct in range(n):
                reads.append(f"ds_read_b128 {vr(R.XB[bf]+4*ct)}, v{R.AX[win]} offset:{(xs & 0xffff) + ct*2048 + (ks & 1)*512}")
            ws = WSLOT[ks & 3]
            win = (ws >> 16) - 1
            for dt in range(8):
                for h2 in range(2):
                    reads.append(f"ds_read_b64_tr_b16 {vr(R.WB[bf]+4*dt+2*h2, 2)}, v{R.AW[win][dt & 1]} offset:{(ws & 0xffff) + h2*1024 + (dt >> 1)*256}")
        dmas = []
        if ks >= 1:
            if ks + 3 < 16:
                dmas += dma_w(R, ks + 3, vm)
            if ks % 2 == 0 and ks // 2 + 1 < 8:
                dmas = dma_x(R, ks // 2 + 1, vm) + dmas
            if ks == 14:
                dmas += dma_kv(R, ("kv", 1)) + dma_kv(R, ("kv", 2))
        ms = []
        if ks > 0:
            bf = (ks - 1) & 1
            for dt in range(8):
                for ct in range(n):
                    ms.append(mfma(R.acc(dt, ct), R.WB[bf] + 4 * dt, R.XB[bf] + 4 * ct, "0" if ks == 1 else None))
        nm = len(ms)
        barpos = nm - (O.kb if nm else 0)
        ri = di = 0
        for i in range(nm + 1):
            if i == barpos:
                while ri < len(reads):
                    a.e(reads[ri]); ri += 1
                while di < len(dmas):
                    emit_group(a, dmas[di], vm); di += 1
                if ks < 16:
                    need = set()
                    if ks + 1 < 16:
                        need = {("w", ks + 1), ("x", (ks + 1) >> 1)}
                    else:
                        need = {("kv", 0)}
                    c = vm.count_for(need)
                    if c is None:
                        a.e("s_waitcnt lgkmcnt(0)")
                    else:
                        a.e(f"s_waitcnt vmcnt({c}) lgkmcnt(0)")
                    a.e("s_barrier")
            if i == nm:
                break
            a.e(ms[i])
            if i < barpos:
                k = 1 if len(reads) <= barpos - 6 else 2
                for _ in range(k):
                    if ri < len(reads):
                        a.e(reads[ri]); ri += 1
                if i % 2 == 1 and di < len(dmas):
                    emit_group(a, dmas[di], vm); di += 1


def qconvert(a, R):
    n = R.nct
    for ds in range(4):
        for ct in range(n):
            q = R.qf(ds, ct)
            for half in range(2):
                c = R.acc(2 * ds + half, ct)
                a.e(f"v_pk_mul_f32 {vr(c,2)}, {vr(c,2)}, s[{S_C}:{S_C+1}]")
                a.e(f"v_pk_mul_f32 {vr(c+2,2)}, {vr(c+2,2)}, s[{S_C}:{S_C+1}]")
                a.e(f"v_cvt_pk_bf16_f32 v{q+2*half}, v{c}, v{c+1}")
                a.e(f"v_cvt_pk_bf16_f32 v{q+2*half+1}, v{c+2}, v{c+3}")
            for half in range(2):
                c = R.acc(2 * ds + half, ct)
                a.e(f"v_mov_b64 {vr(c,2)}, 0")
                a.e(f"v_mov_b64 {vr(c+2,2)}, 0")
            a.e(f"v_permlane16_swap_b32 v{q}, v{q+2}")
            a.e(f"v_permlane16_swap_b32 v{q+1}, v{q+3}")
    for ct in range(n):
        a.e(f"v_mov_b32 v{R.L+ct}, 0")


def frag_buf(R, nfr):
    if R.nF >= 8:
        return R.F + 4 * (nfr % 8)
    return R.F + 4 * (nfr % 5 if nfr < 15 else 5)


def frag_reads(R, nfr):
    b = frag_buf(R, nfr)
    if nfr < 8:
        kt, ds = nfr >> 2, nfr & 3
        return [f"ds_read_b128 {vr(b)}, v{R.AK} offset:{kt*4096 + ds*256}"]
    dt = nfr - 8
    ad = R.AVO if dt & 1 else R.AVE
    return [f"ds_read_b64_tr_b16 {vr(b,2)}, v{ad} offset:{(dt >> 1)*256}",
            f"ds_read_b64_tr_b16 {vr(b+2,2)}, v{ad} offset:{(dt >> 1)*256 + 4096}"]


PF = 4


def softmax_groups(R):
    gs = []
    for kt in range(2):
        for ct in range(R.nct):
            s = R.s(kt, ct)
            p = R.s(0, ct) + 2 * kt
            l = R.L + ct
            for i in range(4):
                gs.append((kt, [f"v_exp_f32 v{s+i}, v{s+i}"]))
            gs.append((kt, [f"v_add_f32 v{l}, v{l}, v{s}", f"v_add_f32 v{l}, v{l}, v{s+1}"]))
            gs.append((kt, [f"v_add_f32 v{l}, v{l}, v{s+2}", f"v_add_f32 v{l}, v{l}, v{s+3}"]))
            gs.append((kt, [f"v_cvt_pk_bf16_f32 v{p}, v{s}, v{s+1}", f"v_cvt_pk_bf16_f32 v{p+1}, v{s+2}, v{s+3}"]))
    return gs


def attn_loop(a, R):
    n = R.nct
    isX = n == 4
    lg = Q(15)
    vm = Q(63)
    for f in range(PF):
        for r in frag_reads(R, f):
            a.e(r); lg.issue(f)
    a.e(f"s_mov_b32 s{S_CNT}, 16")
    a.e(f"s_mov_b32 s{S_STG}, 0")
    a.e(f"s_mov_b32 s{S_STGC}, {STAGE}")
    a.e(".p2align 6")
    a.e(f"L_attn_{R.name}:")

    def barrier():
        a.e("s_waitcnt vmcnt(4)")
        a.e("s_barrier")

    dmas = dma_kv(R, "kv")
    pend_dma = []
    if isX:
        barrier()
        pend_dma = list(dmas)
    a.e(f"s_add_u32 s{S_STG}, s{S_STG}, 1")
    a.e(f"s_and_b32 s{S_STG}, s{S_STG}, 3")
    a.e(f"s_cselect_b32 s{S_DELTA}, s{S_STGC}, {-3*STAGE & 0xffffffff}")
    gs = softmax_groups(R)
    gi = 0

    def wait_frag(f):
        c = lg.count_for({f})
        if c is not None:
            a.e(f"s_waitcnt lgkmcnt({c})")

    def issue_reads(f):
        for r in frag_reads(R, f % 16):
            a.e(r); lg.issue(f % 16)
        if f == 7:
            a.e(f"v_add_u32 v{R.AK}, s{S_DELTA}, v{R.AK}")
        if f == 15:
            a.e(f"v_add_u32 v{R.AVE}, s{S_DELTA}, v{R.AVE}")
            a.e(f"v_add_u32 v{R.AVO}, s{S_DELTA}, v{R.AVO}")

    mi = 0
    for f in range(8):
        kt, ds = f >> 2, f & 3
        wait_frag(f)
        for ct in range(n):
            a.e(mfma(R.s(kt, ct), frag_buf(R, f), R.qf(ds, ct), "0" if ds == 0 else None))
            if ct == 0:
                issue_reads(f + PF)
            elif ct == 2 and pend_dma:
                emit_group(a, pend_dma.pop(0), vm)
            if kt == 1 and (ds * n + ct) >= 3 and gi < len(gs) and gs[gi][0] == 0:
                for l in gs[gi][1]:
                    a.e(l)
                gi += 1
    cnt = 0
    while gi < len(gs):
        if (not isX) and cnt == O.ybar:
            barrier()
            pend_dma = list(dmas)
        for l in gs[gi][1]:
            a.e(l)
        gi += 1
        cnt += 1
        if (not isX) and pend_dma and cnt % 2 == 0:
            emit_group(a, pend_dma.pop(0), vm)
    if (not isX) and cnt <= O.ybar:
        barrier()
        pend_dma = list(dmas)
    for f in range(8, 16):
        dt = f - 8
        wait_frag(f)
        for ct in range(n):
            a.e(mfma(R.acc(dt, ct), frag_buf(R, f), R.s(0, ct)))
            if ct == 0:
                issue_reads(f + PF)
            elif ct == 2 and pend_dma:
                emit_group(a, pend_dma.pop(0), vm)
        if f == 14:
            a.e(f"s_sub_u32 s{S_CNT}, s{S_CNT}, 1")
            a.e(f"s_cmp_lg_u32 s{S_CNT}, 0")
    assert not pend_dma
    assert lg.q == list(range(PF)), lg.q
    a.e(f"s_cbranch_scc1 L_attn_{R.name}")


def epilogue(a, R):
    n = R.nct
    T = R.S
    a.e("s_waitcnt lgkmcnt(0)")
    for ct in range(n):
        a.e(f"v_mov_b32 v{T+ct}, v{R.L+ct}")
    for ct in range(n):
        a.e(f"v_permlane16_swap_b32 v{T+ct}, v{R.L+ct}")
    for ct in range(n):
        a.e(f"v_add_f32 v{R.L+ct}, v{R.L+ct}, v{T+ct}")
    for ct in range(n):
        a.e(f"v_mov_b32 v{T+ct}, v{R.L+ct}")
    for ct in range(n):
        a.e(f"v_permlane32_swap_b32 v{T+ct}, v{R.L+ct}")
    for ct in range(n):
        a.e(f"v_add_f32 v{R.L+ct}, v{R.L+ct}, v{T+ct}")
    for ct in range(n):
        a.e(f"v_rcp_f32 v{T+2*ct}, v{R.L+ct}")
    a.e(f"v_mbcnt_lo_u32_b32 v{R.AK}, -1, 0")
    a.e(f"v_mbcnt_hi_u32_b32 v{R.AK}, -1, v{R.AK}")
    a.e(f"v_lshlrev_b32 v{R.AK}, 4, v{R.AK}")
    for ct in range(n):
        if ct:
            a.e(f"s_add_u32 s{S_OOFF}, s{S_OOFF}, 131072")
        for ds in range(4):
            q = R.qf(ds, ct)
            for half in range(2):
                c = R.acc(2 * ds + half, ct)
                a.e(f"v_pk_mul_f32 {vr(c,2)}, {vr(c,2)}, {vr(T+2*ct,2)} op_sel_hi:[1,0]")
                a.e(f"v_pk_mul_f32 {vr(c+2,2)}, {vr(c+2,2)}, {vr(T+2*ct,2)} op_sel_hi:[1,0]")
                a.e(f"v_cvt_pk_bf16_f32 v{q+2*half}, v{c}, v{c+1}")
                a.e(f"v_cvt_pk_bf16_f32 v{q+2*half+1}, v{c+2}, v{c+3}")
            a.e(f"buffer_store_dwordx4 {vr(q)}, v{R.AK}, {srd(SRD_O)}, s{S_OOFF} offen offset:{ds*1024}")


def k1_setup(a):
    a.e(f"""
s_cmp_ge_u32 s2, 256
s_cbranch_scc1 L_k1_end
s_load_dwordx4 s[44:47], s[0:1], 0
s_load_dwordx4 s[48:51], s[0:1], 16
s_load_dwordx4 s[52:55], s[0:1], 40
s_load_dwordx4 s[56:59], s[0:1], 56
s_load_dwordx4 s[60:63], s[0:1], 88
v_lshrrev_b32 v240, 6, v0
v_and_b32 v241, 63, v0
s_and_b32 s{S_T0}, s2, 7
s_lshr_b32 s{S_T1}, s2, 3
v_readfirstlane_b32 s{S_W}, v240
s_and_b32 s{S_T2}, s{S_T0}, 3
s_lshl_b32 s{S_T2}, s{S_T2}, 2
s_and_b32 s{S_T3}, s{S_T1}, 3
s_add_u32 s{S_T2}, s{S_T2}, s{S_T3}
s_lshr_b32 s{S_T1}, s{S_T1}, 2
s_lshr_b32 s{S_T0}, s{S_T0}, 2
""")
    a.e(f"""
s_lshr_b32 s{S_HSEL}, s{S_W}, 1
s_and_b32 s{S_HSEL}, s{S_HSEL}, 1
s_and_b32 s64, s{S_W}, 1
s_mul_i32 s{S_Q0}, s64, 112
s_lshr_b32 s65, s{S_W}, 2
s_lshl_b32 s66, s65, 6
s_add_u32 s{S_Q0}, s{S_Q0}, s66
s_waitcnt lgkmcnt(0)
s_cmp_eq_u32 s{S_T0}, 0
s_cselect_b32 s44, s44, s52
s_cselect_b32 s45, s45, s53
s_cselect_b32 s46, s46, s54
s_cselect_b32 s47, s47, s55
s_cselect_b32 s48, s48, s56
s_cselect_b32 s49, s49, s57
s_cselect_b32 s50, s50, s58
s_cselect_b32 s51, s51, s59
""")
    a.e(f"""
s_mul_i32 s66, s{S_T1}, 229376
s_add_u32 s{SRD_X}, s44, s66
s_addc_u32 s{SRD_X+1}, s45, 0
s_mov_b32 s{SRD_X+2}, 229376
s_mov_b32 s{SRD_X+3}, 0x00020000
s_lshl_b32 s66, s{S_T2}, 9
s_add_u32 s{SRD_WQ}, s50, s66
s_addc_u32 s{SRD_WQ+1}, s51, 0
s_sub_u32 s{SRD_WQ+2}, 4194304, s66
s_mov_b32 s{SRD_WQ+3}, 0x00020000
s_cmp_eq_u32 s65, 0
s_cselect_b32 s46, s46, s48
s_cselect_b32 s47, s47, s49
s_lshl_b32 s66, s{S_T1}, 5
s_lshl_b32 s67, s{S_T2}, 1
s_add_u32 s67, s67, s{S_HSEL}
s_add_u32 s66, s66, s67
s_lshl_b32 s66, s66, 17
s_add_u32 s{SRD_KV}, s46, s66
s_addc_u32 s{SRD_KV+1}, s47, 0
s_mov_b32 s{SRD_KV+2}, 131072
s_mov_b32 s{SRD_KV+3}, 0x00020000
s_mov_b32 s{SRD_O}, s62
s_mov_b32 s{SRD_O+1}, s63
s_mov_b32 s{SRD_O+2}, {16*14*131072}
s_mov_b32 s{SRD_O+3}, 0x00020000
""")
    a.e(f"""
s_lshl_b32 s66, s{S_T0}, 3
s_add_u32 s66, s66, s{S_T1}
s_mul_i32 s66, s66, 14
s_lshr_b32 s68, s{S_Q0}, 4
s_add_u32 s66, s66, s68
s_lshl_b32 s66, s66, 17
s_lshl_b32 s68, s67, 12
s_add_u32 s{S_OOFF}, s66, s68
s_mov_b32 s{S_C}, {f32bits(math.log2(math.e)/math.sqrt(128.0)):#x}
s_mov_b32 s{S_C+1}, s{S_C}
s_and_b32 s66, s{S_W}, 3
s_lshl_b32 s{S_XM0}, s66, 10
s_lshl_b32 s69, s66, 13
""")
    a.e(f"""
s_lshl_b32 s70, s65, 1
s_add_u32 s70, s70, s64
s_lshl_b32 s{S_WM0}, s70, 11
s_lshl_b32 s71, s{S_HSEL}, 13
s_add_u32 s{S_WM0}, s{S_WM0}, s71
s_lshl_b32 s70, s70, 16
s_lshl_b32 s72, s{S_HSEL}, 8
s_add_u32 s70, s70, s72
s_mov_b32 s{S_KVOFF}, 0
s_lshl_b32 s{S_KVM0}, s{S_HSEL}, 14
s_lshl_b32 s73, s64, 1
""")
    R = Role(4, "X")
    a.e(f"""
v_and_b32 v242, 3, v241
v_bfe_u32 v243, v241, 2, 2
v_lshrrev_b32 v244, 4, v241
v_xor_b32 v245, s73, v242
""")
    a.e(f"""
v_bfe_u32 v246, v241, 2, 3
v_lshlrev_b32 v{R.DX}, 10, v246
v_lshrrev_b32 v246, 5, v241
v_lshl_add_u32 v{R.DX}, v246, 6, v{R.DX}
v_lshl_add_u32 v{R.DX}, v245, 4, v{R.DX}
v_add_u32 v{R.DX}, s69, v{R.DX}
""")
    a.e(f"""
v_lshlrev_b32 v{R.DW}, 13, v243
v_lshl_add_u32 v{R.DW}, v244, 6, v{R.DW}
v_lshl_add_u32 v{R.DW}, v245, 4, v{R.DW}
v_add_u32 v{R.DW}, s70, v{R.DW}
""")
    a.e(f"""
v_bfe_u32 v246, v241, 3, 1
v_lshlrev_b32 v{R.AX[0]}, 10, v246
v_and_b32 v247, 7, v241
v_lshl_add_u32 v{R.AX[0]}, v247, 6, v{R.AX[0]}
v_lshlrev_b32 v247, 1, v246
v_xor_b32 v247, v247, v244
v_lshl_add_u32 v{R.AX[0]}, v247, 4, v{R.AX[0]}
s_lshl_b32 s74, s{S_Q0}, 7
v_add_u32 v{R.AX[0]}, s74, v{R.AX[0]}
v_add_u32 v{R.AX[1]}, 0x10000, v{R.AX[0]}
""")
    a.e(f"""
v_lshlrev_b32 v247, 6, v243
v_and_b32 v240, 1, v244
v_lshl_add_u32 v247, v240, 5, v247
v_lshl_add_u32 v247, v242, 3, v247
""")
    a.e(f"""
v_lshl_add_u32 v{R.AW[0][0]}, v244, 11, v247
s_add_u32 s74, s71, 0x10000
v_add_u32 v{R.AW[0][0]}, s74, v{R.AW[0][0]}
v_xor_b32 v{R.AW[0][1]}, 32, v{R.AW[0][0]}
v_add_u32 v{R.AW[1][0]}, 0x10000, v{R.AW[0][0]}
v_add_u32 v{R.AW[1][1]}, 0x10000, v{R.AW[0][1]}
""")
    a.e(f"""
v_lshl_add_u32 v{R.AVE}, v244, 10, v247
s_add_u32 s74, s{S_KVM0}, 8192
v_add_u32 v{R.AVE}, s74, v{R.AVE}
v_xor_b32 v{R.AVO}, 32, v{R.AVE}
""")
    a.e(f"""
v_lshlrev_b32 v{R.AK}, 10, v243
v_lshl_add_u32 v{R.AK}, v242, 6, v{R.AK}
v_lshrrev_b32 v247, 1, v244
v_lshl_add_u32 v247, v240, 1, v247
v_xor_b32 v247, v247, v246
v_lshl_add_u32 v{R.AK}, v247, 4, v{R.AK}
v_add_u32 v{R.AK}, s{S_KVM0}, v{R.AK}
""")
    a.e(f"""
v_lshlrev_b32 v{R.DKV}, 8, v243
v_lshl_add_u32 v{R.DKV}, v244, 6, v{R.DKV}
s_cmp_ge_u32 s{S_W}, 4
s_cbranch_scc1 L_role_Y
""")


def role_setup(a, R):
    if R.nct == 4:
        a.e(f"""
v_xor_b32 v247, s64, v242
v_lshl_add_u32 v{R.DKV}, v247, 4, v{R.DKV}
s_lshl_b32 s74, s64, 11
v_add_u32 v{R.DKV}, s74, v{R.DKV}
s_add_u32 s{S_KVM0}, s{S_KVM0}, s74
""")
        if O.prio_x:
            a.e(f"s_setprio {O.prio_x}")
    else:
        a.e(f"""
v_lshl_add_u32 v{R.DKV}, v245, 4, v{R.DKV}
s_lshl_b32 s74, s64, 10
v_add_u32 v{R.DKV}, s74, v{R.DKV}
s_add_u32 s{S_KVM0}, s{S_KVM0}, s74
s_add_u32 s{S_KVM0}, s{S_KVM0}, 8192
""")
        if O.prio_y:
            a.e(f"s_setprio {O.prio_y}")


def dump_stamps(a, nst):
    if not O.stamps:
        return
    a.e(f"""
s_waitcnt vmcnt(0) lgkmcnt(0)
s_memtime s[{S_STAMP+2*nst}:{S_STAMP+2*nst+1}]
s_load_dwordx2 s[76:77], s[0:1], 96
s_waitcnt lgkmcnt(0)
s_add_u32 s80, s76, 0x4000000
s_addc_u32 s81, s77, 0
s_mov_b32 s82, 0x100000
s_mov_b32 s83, 0x00020000
s_lshl_b32 s76, s2, 3
s_add_u32 s76, s76, s{S_W}
s_lshl_b32 s76, s76, 6
v_mov_b32 v1, s76
s_mov_b64 exec, 1
""")
    for i in range(nst + 1):
        a.e(f"v_mov_b32 v2, s{S_STAMP+2*i}")
        a.e(f"buffer_store_dword v2, v1, s[80:83], 0 offen offset:{4*i}")


def kernel1():
    a = Asm()
    global S_STAMP
    S_STAMP = 84
    stamp(a, 0)
    k1_setup(a)
    for R in (Role(4, "X"), Role(3, "Y")):
        if R.name == "Y":
            a.e("L_role_Y:")
        role_setup(a, R)
        vm = Q(63)
        qproj(a, R, vm)
        stamp(a, 2)
        qconvert(a, R)
        stamp(a, 3)
        attn_loop(a, R)
        stamp(a, 4)
        epilogue(a, R)
        stamp(a, 5)
        dump_stamps(a, 6)
        a.e("s_endpgm")
    a.e("L_k1_end:")
    a.e("s_endpgm")
    lines, n = fix_hazards(a.lines, verbose=args.verbose, name="k1")
    return lines


def kernel2():
    a = Asm()
    NB = 3
    NSL = 4
    ACC = 0
    OB = 112
    WF = OB + NB * 28
    VO = WF + 32
    AT = VO + 7
    DW = AT + 4
    T = DW + 1
    SO, SW, SOUT = 4, 8, 12

    def acc(nt, ct):
        return ACC + (nt * 7 + ct) * 4

    a.e(f"""
s_cmp_ge_u32 s2, 256
s_cbranch_scc1 L_k2_end
s_load_dwordx2 s[44:45], s[0:1], 32
s_load_dwordx2 s[46:47], s[0:1], 72
s_load_dwordx2 s[48:49], s[0:1], 80
s_load_dwordx2 s[50:51], s[0:1], 96
v_lshrrev_b32 v{T}, 6, v0
v_and_b32 v{T+1}, 63, v0
s_and_b32 s20, s2, 7
s_lshr_b32 s21, s2, 3
v_readfirstlane_b32 s3, v{T}
s_lshr_b32 s22, s20, 2
s_and_b32 s23, s20, 3
s_lshl_b32 s23, s23, 2
s_lshr_b32 s24, s21, 3
s_add_u32 s23, s23, s24
s_and_b32 s24, s21, 7
s_waitcnt lgkmcnt(0)
""")
    a.e(f"""
s_cmp_eq_u32 s22, 0
s_cselect_b32 s44, s44, s46
s_cselect_b32 s45, s45, s47
s_lshl_b32 s25, s22, 4
s_add_u32 s25, s25, s23
s_mul_i32 s25, s25, {7*131072}
s_add_u32 s{SO}, s50, s25
s_addc_u32 s{SO+1}, s51, 0
s_mov_b32 s{SO+2}, {7*131072}
s_mov_b32 s{SO+3}, 0x00020000
s_lshl_b32 s25, s24, 7
s_lshl_b32 s26, s3, 20
s_add_u32 s25, s25, s26
s_add_u32 s{SW}, s44, s25
s_addc_u32 s{SW+1}, s45, 0
s_mov_b32 s{SW+2}, {1023*1024+128}
s_mov_b32 s{SW+3}, 0x00020000
s_mul_i32 s25, s23, {112*2048}
s_lshl_b32 s26, s22, 10
s_add_u32 s25, s25, s26
s_lshl_b32 s26, s24, 7
s_add_u32 s25, s25, s26
s_add_u32 s{SOUT}, s48, s25
s_addc_u32 s{SOUT+1}, s49, 0
s_mov_b32 s{SOUT+2}, {111*2048+128}
s_mov_b32 s{SOUT+3}, 0x00020000
s_lshl_b32 s27, s3, 15
s_mul_i32 s28, s3, {NSL*4096}
""")
    L = T + 1
    a.e(f"v_lshlrev_b32 v{VO}, 4, v{L}")
    a.e(f"v_add_u32 v{VO}, s27, v{VO}")
    for ct in range(1, 7):
        a.e(f"v_add_u32 v{VO+ct}, {ct*131072}, v{VO}")
    a.e(f"""
v_lshrrev_b32 v{T+2}, 3, v{L}
v_lshlrev_b32 v{DW}, 10, v{T+2}
v_and_b32 v{T+3}, 6, v{T+2}
v_and_b32 v{T+4}, 7, v{L}
v_xor_b32 v{T+3}, v{T+3}, v{T+4}
v_lshl_add_u32 v{DW}, v{T+3}, 4, v{DW}
""")
    a.e(f"""
v_lshrrev_b32 v{T+2}, 5, v{L}
v_lshlrev_b32 v{AT}, 10, v{T+2}
v_bfe_u32 v{T+2}, v{L}, 2, 3
v_lshl_add_u32 v{AT}, v{T+2}, 7, v{AT}
v_lshrrev_b32 v{T+2}, 1, v{T+2}
v_lshl_add_u32 v{AT}, v{T+2}, 5, v{AT}
v_and_b32 v{T+3}, 3, v{L}
v_lshl_add_u32 v{AT}, v{T+3}, 3, v{AT}
v_add_u32 v{AT}, s28, v{AT}
v_xor_b32 v{AT+1}, 32, v{AT}
v_xor_b32 v{AT+2}, 64, v{AT}
v_xor_b32 v{AT+3}, 96, v{AT}
""")
    vm = Q(63)
    lg = Q(15)

    def loads(st):
        out = []
        if st >= 32:
            return out
        for blk in range(4):
            out.append(([f"s_add_u32 m0, s28, {(st % NSL)*4096 + blk*1024}",
                         f"s_mov_b32 s30, {st*32768 + blk*8192}",
                         f"buffer_load_dwordx4 v{DW}, {srd(SW)}, s30 offen lds"], ("w", st)))
        first = True
        for ct in range(7):
            g = []
            if first:
                g.append(f"s_mov_b32 s31, {st*1024}")
                first = False
            g.append(f"buffer_load_dwordx4 {vr(OB+(st % NB)*28+4*ct)}, v{VO+ct}, {srd(SO)}, s31 offen")
            out.append((g, ("o", st, ct)))
        return out

    def wreads(st):
        out = []
        for nt in range(4):
            b = WF + (st & 1) * 16 + 4 * nt
            out.append(f"ds_read_b64_tr_b16 {vr(b,2)}, v{AT+nt} offset:{(st % NSL)*4096}")
            out.append(f"ds_read_b64_tr_b16 {vr(b+2,2)}, v{AT+nt} offset:{(st % NSL)*4096+2048}")
        return out

    for st in range(NB - 1):
        for g in loads(st):
            emit_group(a, g, vm)
    c = vm.count_for({("w", 0)})
    a.e(f"s_waitcnt vmcnt({c})")
    for r in wreads(0):
        a.e(r)
    for st in range(32):
        pend = loads(st + NB - 1)
        rd = wreads(st + 1) if st + 1 < 32 else []
        a.e("s_waitcnt lgkmcnt(0)")
        mi = 0
        for ct in range(7):
            c = vm.count_for({("o", st, ct)})
            if c is not None:
                a.e(f"s_waitcnt vmcnt({c})")
            for nt in range(4):
                a.e(mfma(acc(nt, ct), WF + (st & 1) * 16 + 4 * nt, OB + (st % NB) * 28 + 4 * ct, "0" if st == 0 else None))
                if mi % 2 == 0 and pend:
                    emit_group(a, pend.pop(0), vm)
                if mi == 16 and rd:
                    c = vm.count_for({("w", st + 1)})
                    if c is not None:
                        a.e(f"s_waitcnt vmcnt({c})")
                if mi >= 16 and rd:
                    a.e(rd.pop(0))
                mi += 1
        assert not pend and not rd
    a.e("s_barrier")
    a.e(f"v_lshlrev_b32 v{T+2}, 4, v{L}")
    a.e(f"s_mul_i32 s29, s3, 7168")
    a.e(f"v_add_u32 v{T+3}, s29, v{T+2}")
    a.e(f"v_add_u32 v{T+5}, {2*28672}, v{T+3}")
    a.e(f"s_mul_i32 s29, s3, 28672")
    a.e(f"v_add_u32 v{T+4}, s29, v{T+2}")
    for nt in range(4):
        for ct in range(7):
            base = T + 3 if nt < 2 else T + 5
            a.e(f"ds_write_b128 v{base}, {vr(acc(nt, ct))} offset:{(nt & 1)*28672 + ct*1024}")
    a.e("s_waitcnt lgkmcnt(0)")
    a.e("s_barrier")
    for ct in range(7):
        for s in range(4):
            a.e(f"ds_read_b128 {vr((ct*4+s)*4)}, v{T+4} offset:{s*7168 + ct*1024}")
    a.e(f"""
v_and_b32 v{T+2}, 15, v{L}
v_lshlrev_b32 v{T+2}, 11, v{T+2}
v_lshrrev_b32 v{T+3}, 4, v{L}
v_lshl_add_u32 v{T+2}, v{T+3}, 3, v{T+2}
s_lshl_b32 s29, s3, 5
v_add_u32 v{T+2}, s29, v{T+2}
s_waitcnt lgkmcnt(0)
""")
    for ct in range(7):
        b = ct * 16
        for i in range(0, 4, 2):
            a.e(f"v_pk_add_f32 {vr(b+i,2)}, {vr(b+i,2)}, {vr(b+4+i,2)}")
            a.e(f"v_pk_add_f32 {vr(b+8+i,2)}, {vr(b+8+i,2)}, {vr(b+12+i,2)}")
            a.e(f"v_pk_add_f32 {vr(b+i,2)}, {vr(b+i,2)}, {vr(b+8+i,2)}")
        a.e(f"v_cvt_pk_bf16_f32 v{b}, v{b}, v{b+1}")
        a.e(f"v_cvt_pk_bf16_f32 v{b+1}, v{b+2}, v{b+3}")
        a.e(f"s_mov_b32 s29, {ct*16*2048}")
        a.e(f"buffer_store_dwordx2 {vr(b,2)}, v{T+2}, {srd(SOUT)}, s29 offen")
    a.e("L_k2_end:")
    a.e("s_endpgm")
    lines, n = fix_hazards(a.lines, verbose=args.verbose, name="k2")
    return lines, T + 6


def kd(name, nv, ns=102):
    acc = (nv + 3) // 4 * 4
    return f""".amdhsa_kernel {name}
  .amdhsa_next_free_vgpr {nv}
  .amdhsa_next_free_sgpr {ns}
  .amdhsa_accum_offset {acc}
  .amdhsa_group_segment_fixed_size 0
  .amdhsa_kernarg_size 104
  .amdhsa_user_sgpr_count 2
  .amdhsa_user_sgpr_kernarg_segment_ptr 1
  .amdhsa_system_sgpr_workgroup_id_x 1
.end_amdhsa_kernel
"""


def main():
    k1 = kernel1()
    k2, nv2 = kernel2()
    out = [HEADER.rstrip()]
    out.append(f"; @launch kernel={K1} grid=(256,1,1) block=(512,1,1) lds=163840")
    if not args.only1:
        out.append(f"; @launch kernel={K2} grid=(256,1,1) block=(256,1,1) lds=114688")
    out.append('.amdgcn_target "amdgcn-amd-amdhsa--gfx950"\n.text')
    for name, body in ((K1, k1), (K2, k2)):
        out.append(f".globl {name}\n.p2align 8\n.type {name},@function\n{name}:")
        out += ["    " + l if not l.endswith(":") else l for l in body if l]
    out.append('.section .rodata,"a"\n.p2align 6')
    out.append(kd(K1, 256))
    out.append(".p2align 6")
    out.append(kd(K2, nv2))
    open(args.o, "w").write("\n".join(out) + "\n")


if __name__ == "__main__":
    ap = argparse.ArgumentParser()
    ap.add_argument("-o", default="concat_heads__mha_block_cached__gqa_block_cached__near_ridge.s")
    ap.add_argument("--verbose", action="store_true")
    ap.add_argument("--only1", action="store_true")
    ap.add_argument("--opt", action="append", default=[])
    args = ap.parse_args()
    for o in args.opt:
        k, v = o.split("=")
        setattr(O, k, type(getattr(O, k))(int(v)))
    main()
```

```python
import sys, math, struct, argparse
sys.path.insert(0, "gen")
from asmlib import Asm, fix_hazards, Q

K1 = "attn_kernel"
K2 = "oproj_kernel"

HEADER = open("concat_heads__mha_block_cached__gqa_block_cached__near_ridge.s.ref").read().split("; Override launch")[0]


def f32bits(x):
    return struct.unpack("<I", struct.pack("<f", x))[0]


def vr(a, n=4):
    return f"v[{a}:{a+n-1}]" if n > 1 else f"v{a}"


class Opt:
    stamps = False
    kb = 4
    ybar = 12
    prio_y = 0
    prio_x = 0
    stnt = True
    kvsame = 0
    rot = 5


O = Opt()

XSLOT = [32768, 98304]
WSLOT = [65536, 81920, 131072, 147456]
STAGE = 32768

S_W = 3
SRD_X, SRD_WQ, SRD_KV, SRD_O = 4, 8, 12, 16
S_T0, S_T1, S_T2, S_T3 = 20, 21, 22, 23
S_KVOFF, S_KVOFF2, S_KVM0 = 24, 25, 26
S_CNT, S_DELTA, S_STG = 27, 28, 29
S_C = 30
S_XM0, S_WM0 = 32, 33
S_HSEL, S_Q0 = 34, 35
S_OOFF = 36
S_STGC = 37
S_KVN = 38
S_STAMP = 40


def srd(n):
    return f"s[{n}:{n+3}]"


class Role:
    def __init__(self, nct, name):
        self.nct = nct
        self.name = name
        n = nct
        self.ACC = 0
        self.QF = 32 * n
        self.S = self.QF + 16 * n
        self.F = self.S + 8 * n
        self.nF = (248 - self.F) // 4
        self.L = 248
        self.AK, self.AVE, self.AVO, self.DKV = 252, 253, 254, 255
        self.WB = [128, 160]
        self.XB = [192, 208]
        self.AX = [224, 225]
        self.AW = [[226, 227], [228, 229]]
        self.DX, self.DW = 230, 231

    def acc(self, dt, ct):
        return self.ACC + (dt * self.nct + ct) * 4

    def qf(self, ds, ct):
        return self.QF + (ds * self.nct + ct) * 4

    def s(self, kt, ct):
        return self.S + ct * 8 + kt * 4


stamp_n = [0]


def stamp(a, idx):
    if O.stamps:
        a.e(f"s_memtime s[{S_STAMP+2*idx}:{S_STAMP+2*idx+1}]")


def mfma(d, A, B, c=None):
    cc = vr(d) if c is None else c
    return f"v_mfma_f32_16x16x32_bf16 {vr(d)}, {vr(A)}, {vr(B)}, {cc}"


def dma_x(R, pair, vm):
    out = []
    base_blk = 4 if R.nct == 4 else 0
    for i in range(4):
        blk0 = base_blk + 8 * i
        if blk0 >= 28:
            continue
        g = [f"s_add_u32 m0, s{S_XM0}, {XSLOT[pair & 1] + blk0*1024}",
             f"s_mov_b32 s{S_T0}, {blk0*8192 + pair*128}",
             f"buffer_load_dwordx4 v{R.DX}, {srd(SRD_X)}, s{S_T0} offen lds"]
        out.append((g, ("x", pair)))
    return out


def dma_w(R, ks, vm):
    out = []
    for i in range(2):
        g = [f"s_add_u32 m0, s{S_WM0}, {WSLOT[ks & 3] + i*1024}",
             f"s_mov_b32 s{S_T1}, {ks*262144 + i*32768}",
             f"buffer_load_dwordx4 v{R.DW}, {srd(SRD_WQ)}, s{S_T1} offen lds"]
        out.append((g, ("w", ks)))
    return out


def dma_kv(R, tag):
    step = 1024 if R.nct == 4 else 2048
    nt = " nt" if O.stnt else ""
    out = []
    out.append(([f"s_mov_b32 m0, s{S_KVM0}",
                 f"s_add_u32 s{S_KVOFF2}, s{S_KVOFF}, 4096",
                 f"buffer_load_dwordx4 v{R.DKV}, {srd(SRD_KV)}, s{S_KVOFF} offen{nt} lds"], tag))
    out.append(([f"buffer_load_dwordx4 v{R.DKV}, {srd(SRD_KV)}, s{S_KVOFF} offen offset:{step}{nt} lds",
                 f"s_add_u32 s{S_KVOFF}, s{S_KVOFF}, 8192",
                 f"s_and_b32 s{S_KVOFF}, s{S_KVOFF}, 0x1ffff"], tag))
    out.append(([f"s_add_u32 m0, s{S_KVM0}, 4096",
                 f"s_sub_u32 s{S_KVN}, s{S_KVN}, 1",
                 f"buffer_load_dwordx4 v{R.DKV}, {srd(SRD_KV)}, s{S_KVOFF2} offen{nt} lds"], tag))
    out.append(([f"buffer_load_dwordx4 v{R.DKV}, {srd(SRD_KV)}, s{S_KVOFF2} offen offset:{step}{nt} lds",
                 f"s_cmp_gt_i32 s{S_KVN}, 0",
                 f"s_cselect_b32 s{SRD_KV+2}, s{SRD_KV+2}, 0",
                 f"s_add_u32 s{S_KVM0}, s{S_KVM0}, {STAGE}",
                 f"s_and_b32 s{S_KVM0}, s{S_KVM0}, 0x1ffff"], tag))
    return out


def emit_group(a, g, vm):
    lines, tag = g
    for l in lines:
        a.e(l)
    vm.issue(tag)


def qproj(a, R, vm):
    n = R.nct
    for g in dma_x(R, 0, vm) + dma_w(R, 0, vm) + dma_w(R, 1, vm) + dma_x(R, 1, vm) + dma_w(R, 2, vm) + dma_w(R, 3, vm) + dma_kv(R, ("kv", 0)):
        emit_group(a, g, vm)
    c = vm.count_for({("x", 0), ("w", 0)})
    a.e(f"s_waitcnt vmcnt({c})")
    a.e("s_barrier")
    stamp(a, 1)
    for ks in range(17):
        reads = []
        if ks < 16:
            bf = ks & 1
            pair = ks >> 1
            xs = XSLOT[pair & 1]
            win = xs >> 16
            for ct in range(n):
                reads.append(f"ds_read_b128 {vr(R.XB[bf]+4*ct)}, v{R.AX[win]} offset:{(xs & 0xffff) + ct*2048 + (ks & 1)*512}")
            ws = WSLOT[ks & 3]
            win = (ws >> 16) - 1
            for dt in range(8):
                for h2 in range(2):
                    reads.append(f"ds_read_b64_tr_b16 {vr(R.WB[bf]+4*dt+2*h2, 2)}, v{R.AW[win][dt & 1]} offset:{(ws & 0xffff) + h2*1024 + (dt >> 1)*256}")
        dmas = []
        if ks >= 1:
            if ks + 3 < 16:
                dmas += dma_w(R, ks + 3, vm)
            if ks % 2 == 0 and ks // 2 + 1 < 8:
                dmas = dma_x(R, ks // 2 + 1, vm) + dmas
            if ks == 14:
                dmas += dma_kv(R, ("kv", 1)) + dma_kv(R, ("kv", 2))
        ms = []
        if ks > 0:
            bf = (ks - 1) & 1
            for dt in range(8):
                for ct in range(n):
                    ms.append(mfma(R.acc(dt, ct), R.WB[bf] + 4 * dt, R.XB[bf] + 4 * ct, "0" if ks == 1 else None))
        nm = len(ms)
        barpos = nm - (O.kb if nm else 0)
        ri = di = 0
        for i in range(nm + 1):
            if i == barpos:
                while ri < len(reads):
                    a.e(reads[ri]); ri += 1
                while di < len(dmas):
                    emit_group(a, dmas[di], vm); di += 1
                if ks < 16:
                    need = set()
                    if ks + 1 < 16:
                        need = {("w", ks + 1), ("x", (ks + 1) >> 1)}
                    else:
                        need = {("kv", 0)}
                    c = vm.count_for(need)
                    if c is None:
                        a.e("s_waitcnt lgkmcnt(0)")
                    else:
                        a.e(f"s_waitcnt vmcnt({c}) lgkmcnt(0)")
                    a.e("s_barrier")
            if i == nm:
                break
            a.e(ms[i])
            if i < barpos:
                k = 1 if len(reads) <= barpos - 6 else 2
                for _ in range(k):
                    if ri < len(reads):
                        a.e(reads[ri]); ri += 1
                if i % 2 == 1 and di < len(dmas):
                    emit_group(a, dmas[di], vm); di += 1


def qconvert(a, R):
    n = R.nct
    for ds in range(4):
        for ct in range(n):
            q = R.qf(ds, ct)
            for half in range(2):
                c = R.acc(2 * ds + half, ct)
                a.e(f"v_pk_mul_f32 {vr(c,2)}, {vr(c,2)}, s[{S_C}:{S_C+1}]")
                a.e(f"v_pk_mul_f32 {vr(c+2,2)}, {vr(c+2,2)}, s[{S_C}:{S_C+1}]")
                a.e(f"v_cvt_pk_bf16_f32 v{q+2*half}, v{c}, v{c+1}")
                a.e(f"v_cvt_pk_bf16_f32 v{q+2*half+1}, v{c+2}, v{c+3}")
            for half in range(2):
                c = R.acc(2 * ds + half, ct)
                a.e(f"v_mov_b64 {vr(c,2)}, 0")
                a.e(f"v_mov_b64 {vr(c+2,2)}, 0")
            a.e(f"v_permlane16_swap_b32 v{q}, v{q+2}")
            a.e(f"v_permlane16_swap_b32 v{q+1}, v{q+3}")
    for ct in range(n):
        a.e(f"v_mov_b32 v{R.L+ct}, 0")


def frag_buf(R, nfr):
    if R.nF >= 8:
        return R.F + 4 * (nfr % 8)
    return R.F + 4 * (nfr % 5 if nfr < 15 else 5)


def frag_reads(R, nfr):
    b = frag_buf(R, nfr)
    if nfr < 8:
        kt, ds = nfr >> 2, nfr & 3
        return [f"ds_read_b128 {vr(b)}, v{R.AK} offset:{kt*4096 + ds*256}"]
    dt = nfr - 8
    ad = R.AVO if dt & 1 else R.AVE
    return [f"ds_read_b64_tr_b16 {vr(b,2)}, v{ad} offset:{(dt >> 1)*256}",
            f"ds_read_b64_tr_b16 {vr(b+2,2)}, v{ad} offset:{(dt >> 1)*256 + 4096}"]


PF = 4


def softmax_groups(R):
    gs = []
    for kt in range(2):
        for ct in range(R.nct):
            s = R.s(kt, ct)
            p = R.s(0, ct) + 2 * kt
            l = R.L + ct
            for i in range(4):
                gs.append((kt, [f"v_exp_f32 v{s+i}, v{s+i}"]))
            gs.append((kt, [f"v_add_f32 v{l}, v{l}, v{s}", f"v_add_f32 v{l}, v{l}, v{s+1}"]))
            gs.append((kt, [f"v_add_f32 v{l}, v{l}, v{s+2}", f"v_add_f32 v{l}, v{l}, v{s+3}"]))
            gs.append((kt, [f"v_cvt_pk_bf16_f32 v{p}, v{s}, v{s+1}", f"v_cvt_pk_bf16_f32 v{p+1}, v{s+2}, v{s+3}"]))
    return gs


def attn_loop(a, R):
    n = R.nct
    isX = n == 4
    lg = Q(15)
    vm = Q(63)
    for f in range(PF):
        for r in frag_reads(R, f):
            a.e(r); lg.issue(f)
    a.e(f"s_mov_b32 s{S_CNT}, 16")
    a.e(f"s_mov_b32 s{S_STG}, 0")
    a.e(f"s_mov_b32 s{S_STGC}, {STAGE}")
    a.e(".p2align 6")
    a.e(f"L_attn_{R.name}:")

    def barrier():
        a.e("s_waitcnt vmcnt(4)")
        a.e("s_barrier")

    dmas = dma_kv(R, "kv")
    pend_dma = []
    if isX:
        barrier()
        pend_dma = list(dmas)
    a.e(f"s_add_u32 s{S_STG}, s{S_STG}, 1")
    a.e(f"s_and_b32 s{S_STG}, s{S_STG}, 3")
    a.e(f"s_cselect_b32 s{S_DELTA}, s{S_STGC}, {-3*STAGE & 0xffffffff}")
    gs = softmax_groups(R)
    gi = 0

    def wait_frag(f):
        c = lg.count_for({f})
        if c is not None:
            a.e(f"s_waitcnt lgkmcnt({c})")

    def issue_reads(f):
        for r in frag_reads(R, f % 16):
            a.e(r); lg.issue(f % 16)
        if f == 7:
            a.e(f"v_add_u32 v{R.AK}, s{S_DELTA}, v{R.AK}")
        if f == 15:
            a.e(f"v_add_u32 v{R.AVE}, s{S_DELTA}, v{R.AVE}")
            a.e(f"v_add_u32 v{R.AVO}, s{S_DELTA}, v{R.AVO}")

    mi = 0
    for f in range(8):
        kt, ds = f >> 2, f & 3
        wait_frag(f)
        for ct in range(n):
            a.e(mfma(R.s(kt, ct), frag_buf(R, f), R.qf(ds, ct), "0" if ds == 0 else None))
            if ct == 0:
                issue_reads(f + PF)
            elif ct == 2 and pend_dma:
                emit_group(a, pend_dma.pop(0), vm)
            if kt == 1 and (ds * n + ct) >= 3 and gi < len(gs) and gs[gi][0] == 0:
                for l in gs[gi][1]:
                    a.e(l)
                gi += 1
    cnt = 0
    while gi < len(gs):
        if (not isX) and cnt == O.ybar:
            barrier()
            pend_dma = list(dmas)
        for l in gs[gi][1]:
            a.e(l)
        gi += 1
        cnt += 1
        if (not isX) and pend_dma and cnt % 2 == 0:
            emit_group(a, pend_dma.pop(0), vm)
    if (not isX) and cnt <= O.ybar:
        barrier()
        pend_dma = list(dmas)
    for f in range(8, 16):
        dt = f - 8
        wait_frag(f)
        for ct in range(n):
            a.e(mfma(R.acc(dt, ct), frag_buf(R, f), R.s(0, ct)))
            if ct == 0:
                issue_reads(f + PF)
            elif ct == 2 and pend_dma:
                emit_group(a, pend_dma.pop(0), vm)
        if f == 14:
            a.e(f"s_sub_u32 s{S_CNT}, s{S_CNT}, 1")
            a.e(f"s_cmp_lg_u32 s{S_CNT}, 0")
    assert not pend_dma
    assert lg.q == list(range(PF)), lg.q
    a.e(f"s_cbranch_scc1 L_attn_{R.name}")


def epilogue(a, R):
    n = R.nct
    T = R.S
    a.e("s_waitcnt lgkmcnt(0)")
    for ct in range(n):
        a.e(f"v_mov_b32 v{T+ct}, v{R.L+ct}")
    for ct in range(n):
        a.e(f"v_permlane16_swap_b32 v{T+ct}, v{R.L+ct}")
    for ct in range(n):
        a.e(f"v_add_f32 v{R.L+ct}, v{R.L+ct}, v{T+ct}")
    for ct in range(n):
        a.e(f"v_mov_b32 v{T+ct}, v{R.L+ct}")
    for ct in range(n):
        a.e(f"v_permlane32_swap_b32 v{T+ct}, v{R.L+ct}")
    for ct in range(n):
        a.e(f"v_add_f32 v{R.L+ct}, v{R.L+ct}, v{T+ct}")
    for ct in range(n):
        a.e(f"v_rcp_f32 v{T+2*ct}, v{R.L+ct}")
    a.e(f"v_mbcnt_lo_u32_b32 v{R.AK}, -1, 0")
    a.e(f"v_mbcnt_hi_u32_b32 v{R.AK}, -1, v{R.AK}")
    a.e(f"v_lshlrev_b32 v{R.AK}, 4, v{R.AK}")
    for ct in range(n):
        if ct:
            a.e(f"s_add_u32 s{S_OOFF}, s{S_OOFF}, 131072")
        for ds in range(4):
            q = R.qf(ds, ct)
            for half in range(2):
                c = R.acc(2 * ds + half, ct)
                a.e(f"v_pk_mul_f32 {vr(c,2)}, {vr(c,2)}, {vr(T+2*ct,2)} op_sel_hi:[1,0]")
                a.e(f"v_pk_mul_f32 {vr(c+2,2)}, {vr(c+2,2)}, {vr(T+2*ct,2)} op_sel_hi:[1,0]")
                a.e(f"v_cvt_pk_bf16_f32 v{q+2*half}, v{c}, v{c+1}")
                a.e(f"v_cvt_pk_bf16_f32 v{q+2*half+1}, v{c+2}, v{c+3}")
            a.e(f"buffer_store_dwordx4 {vr(q)}, v{R.AK}, {srd(SRD_O)}, s{S_OOFF} offen offset:{ds*1024}")


def k1_setup(a):
    a.e(f"""
s_cmp_ge_u32 s2, 256
s_cbranch_scc1 L_k1_end
s_load_dwordx4 s[44:47], s[0:1], 0
s_load_dwordx4 s[48:51], s[0:1], 16
s_load_dwordx4 s[52:55], s[0:1], 40
s_load_dwordx4 s[56:59], s[0:1], 56
s_load_dwordx4 s[60:63], s[0:1], 88
v_lshrrev_b32 v240, 6, v0
v_and_b32 v241, 63, v0
s_and_b32 s{S_T0}, s2, 7
s_lshr_b32 s{S_T1}, s2, 3
v_readfirstlane_b32 s{S_W}, v240
s_and_b32 s{S_T2}, s{S_T0}, 3
s_lshl_b32 s{S_T2}, s{S_T2}, 2
s_and_b32 s{S_T3}, s{S_T1}, 3
s_add_u32 s{S_T2}, s{S_T2}, s{S_T3}
s_lshr_b32 s{S_T1}, s{S_T1}, 2
s_lshr_b32 s{S_T0}, s{S_T0}, 2
""")
    a.e(f"""
s_lshr_b32 s{S_HSEL}, s{S_W}, 1
s_and_b32 s{S_HSEL}, s{S_HSEL}, 1
s_and_b32 s64, s{S_W}, 1
s_mul_i32 s{S_Q0}, s64, 112
s_lshr_b32 s65, s{S_W}, 2
s_lshl_b32 s66, s65, 6
s_add_u32 s{S_Q0}, s{S_Q0}, s66
s_waitcnt lgkmcnt(0)
s_cmp_eq_u32 s{S_T0}, 0
s_cselect_b32 s44, s44, s52
s_cselect_b32 s45, s45, s53
s_cselect_b32 s46, s46, s54
s_cselect_b32 s47, s47, s55
s_cselect_b32 s48, s48, s56
s_cselect_b32 s49, s49, s57
s_cselect_b32 s50, s50, s58
s_cselect_b32 s51, s51, s59
""")
    a.e(f"""
s_mul_i32 s66, s{S_T1}, 229376
s_add_u32 s{SRD_X}, s44, s66
s_addc_u32 s{SRD_X+1}, s45, 0
s_mov_b32 s{SRD_X+2}, 229376
s_mov_b32 s{SRD_X+3}, 0x00020000
s_lshl_b32 s66, s{S_T2}, 9
s_add_u32 s{SRD_WQ}, s50, s66
s_addc_u32 s{SRD_WQ+1}, s51, 0
s_sub_u32 s{SRD_WQ+2}, 4194304, s66
s_mov_b32 s{SRD_WQ+3}, 0x00020000
s_cmp_eq_u32 s65, 0
s_cselect_b32 s46, s46, s48
s_cselect_b32 s47, s47, s49
s_lshl_b32 s66, s{S_T1}, 5
s_lshl_b32 s67, s{S_T2}, 1
s_add_u32 s67, s67, s{S_HSEL}
s_add_u32 s66, s66, s67
s_lshl_b32 s66, s66, 17
s_and_b32 s66, s66, {0x20000 if O.kvsame else -1}
s_add_u32 s{SRD_KV}, s46, s66
s_addc_u32 s{SRD_KV+1}, s47, 0
s_mov_b32 s{SRD_KV+2}, 131072
s_mov_b32 s{SRD_KV+3}, 0x00020000
s_mov_b32 s{SRD_O}, s62
s_mov_b32 s{SRD_O+1}, s63
s_mov_b32 s{SRD_O+2}, {16*14*131072}
s_mov_b32 s{SRD_O+3}, 0x00020000
""")
    a.e(f"""
s_lshl_b32 s66, s{S_T0}, 3
s_add_u32 s66, s66, s{S_T1}
s_mul_i32 s66, s66, 14
s_lshr_b32 s68, s{S_Q0}, 4
s_add_u32 s66, s66, s68
s_lshl_b32 s66, s66, 17
s_lshl_b32 s68, s67, 12
s_add_u32 s{S_OOFF}, s66, s68
s_mov_b32 s{S_C}, {f32bits(math.log2(math.e)/math.sqrt(128.0)):#x}
s_mov_b32 s{S_C+1}, s{S_C}
s_and_b32 s66, s{S_W}, 3
s_lshl_b32 s{S_XM0}, s66, 10
s_lshl_b32 s69, s66, 13
""")
    a.e(f"""
s_lshl_b32 s70, s65, 1
s_add_u32 s70, s70, s64
s_lshl_b32 s{S_WM0}, s70, 11
s_lshl_b32 s71, s{S_HSEL}, 13
s_add_u32 s{S_WM0}, s{S_WM0}, s71
s_lshl_b32 s70, s70, 16
s_lshl_b32 s72, s{S_HSEL}, 8
s_add_u32 s70, s70, s72
s_lshr_b32 s{S_KVOFF}, s2, 3
s_lshl_b32 s{S_KVOFF}, s{S_KVOFF}, 1
s_add_u32 s{S_KVOFF}, s{S_KVOFF}, s{S_HSEL}
s_mul_i32 s{S_KVOFF}, s{S_KVOFF}, {O.rot}
s_add_u32 s{S_KVOFF}, s{S_KVOFF}, s2
s_and_b32 s{S_KVOFF}, s{S_KVOFF}, {15 if O.rot else 0}
s_lshl_b32 s{S_KVOFF}, s{S_KVOFF}, 13
s_mov_b32 s{S_KVN}, 16
s_lshl_b32 s{S_KVM0}, s{S_HSEL}, 14
s_lshl_b32 s73, s64, 1
""")
    R = Role(4, "X")
    a.e(f"""
v_and_b32 v242, 3, v241
v_bfe_u32 v243, v241, 2, 2
v_lshrrev_b32 v244, 4, v241
v_xor_b32 v245, s73, v242
""")
    a.e(f"""
v_bfe_u32 v246, v241, 2, 3
v_lshlrev_b32 v{R.DX}, 10, v246
v_lshrrev_b32 v246, 5, v241
v_lshl_add_u32 v{R.DX}, v246, 6, v{R.DX}
v_lshl_add_u32 v{R.DX}, v245, 4, v{R.DX}
v_add_u32 v{R.DX}, s69, v{R.DX}
""")
    a.e(f"""
v_lshlrev_b32 v{R.DW}, 13, v243
v_lshl_add_u32 v{R.DW}, v244, 6, v{R.DW}
v_lshl_add_u32 v{R.DW}, v245, 4, v{R.DW}
v_add_u32 v{R.DW}, s70, v{R.DW}
""")
    a.e(f"""
v_bfe_u32 v246, v241, 3, 1
v_lshlrev_b32 v{R.AX[0]}, 10, v246
v_and_b32 v247, 7, v241
v_lshl_add_u32 v{R.AX[0]}, v247, 6, v{R.AX[0]}
v_lshlrev_b32 v247, 1, v246
v_xor_b32 v247, v247, v244
v_lshl_add_u32 v{R.AX[0]}, v247, 4, v{R.AX[0]}
s_lshl_b32 s74, s{S_Q0}, 7
v_add_u32 v{R.AX[0]}, s74, v{R.AX[0]}
v_add_u32 v{R.AX[1]}, 0x10000, v{R.AX[0]}
""")
    a.e(f"""
v_lshlrev_b32 v247, 6, v243
v_and_b32 v240, 1, v244
v_lshl_add_u32 v247, v240, 5, v247
v_lshl_add_u32 v247, v242, 3, v247
""")
    a.e(f"""
v_lshl_add_u32 v{R.AW[0][0]}, v244, 11, v247
s_add_u32 s74, s71, 0x10000
v_add_u32 v{R.AW[0][0]}, s74, v{R.AW[0][0]}
v_xor_b32 v{R.AW[0][1]}, 32, v{R.AW[0][0]}
v_add_u32 v{R.AW[1][0]}, 0x10000, v{R.AW[0][0]}
v_add_u32 v{R.AW[1][1]}, 0x10000, v{R.AW[0][1]}
""")
    a.e(f"""
v_lshl_add_u32 v{R.AVE}, v244, 10, v247
s_add_u32 s74, s{S_KVM0}, 8192
v_add_u32 v{R.AVE}, s74, v{R.AVE}
v_xor_b32 v{R.AVO}, 32, v{R.AVE}
""")
    a.e(f"""
v_lshlrev_b32 v{R.AK}, 10, v243
v_lshl_add_u32 v{R.AK}, v242, 6, v{R.AK}
v_lshrrev_b32 v247, 1, v244
v_lshl_add_u32 v247, v240, 1, v247
v_xor_b32 v247, v247, v246
v_lshl_add_u32 v{R.AK}, v247, 4, v{R.AK}
v_add_u32 v{R.AK}, s{S_KVM0}, v{R.AK}
""")
    a.e(f"""
v_lshlrev_b32 v{R.DKV}, 8, v243
v_lshl_add_u32 v{R.DKV}, v244, 6, v{R.DKV}
s_cmp_ge_u32 s{S_W}, 4
s_cbranch_scc1 L_role_Y
""")


def role_setup(a, R):
    if R.nct == 4:
        a.e(f"""
v_xor_b32 v247, s64, v242
v_lshl_add_u32 v{R.DKV}, v247, 4, v{R.DKV}
s_lshl_b32 s74, s64, 11
v_add_u32 v{R.DKV}, s74, v{R.DKV}
s_add_u32 s{S_KVM0}, s{S_KVM0}, s74
""")
        if O.prio_x:
            a.e(f"s_setprio {O.prio_x}")
    else:
        a.e(f"""
v_lshl_add_u32 v{R.DKV}, v245, 4, v{R.DKV}
s_lshl_b32 s74, s64, 10
v_add_u32 v{R.DKV}, s74, v{R.DKV}
s_add_u32 s{S_KVM0}, s{S_KVM0}, s74
s_add_u32 s{S_KVM0}, s{S_KVM0}, 8192
""")
        if O.prio_y:
            a.e(f"s_setprio {O.prio_y}")


def dump_stamps(a, nst):
    if not O.stamps:
        return
    a.e(f"""
s_waitcnt vmcnt(0) lgkmcnt(0)
s_memtime s[{S_STAMP+2*nst}:{S_STAMP+2*nst+1}]
s_load_dwordx2 s[76:77], s[0:1], 96
s_waitcnt lgkmcnt(0)
s_add_u32 s80, s76, 0x4000000
s_addc_u32 s81, s77, 0
s_mov_b32 s82, 0x100000
s_mov_b32 s83, 0x00020000
s_lshl_b32 s76, s2, 3
s_add_u32 s76, s76, s{S_W}
s_lshl_b32 s76, s76, 6
v_mov_b32 v1, s76
s_mov_b64 exec, 1
""")
    a.e("s_memrealtime s[78:79]\ns_waitcnt lgkmcnt(0)\ns_sub_u32 s78, s78, s100\nv_mov_b32 v2, s78")
    a.e("buffer_store_dword v2, v1, s[80:83], 0 offen offset:60")
    a.e("v_mov_b32 v2, s100")
    a.e("buffer_store_dword v2, v1, s[80:83], 0 offen offset:56")
    for i in range(nst + 1):
        a.e(f"v_mov_b32 v2, s{S_STAMP+2*i}")
        a.e(f"buffer_store_dword v2, v1, s[80:83], 0 offen offset:{4*i}")


def kernel1():
    a = Asm()
    global S_STAMP
    S_STAMP = 84
    stamp(a, 0)
    if O.stamps:
        a.e("s_memrealtime s[100:101]")
    k1_setup(a)
    for R in (Role(4, "X"), Role(3, "Y")):
        if R.name == "Y":
            a.e("L_role_Y:")
        role_setup(a, R)
        vm = Q(63)
        qproj(a, R, vm)
        stamp(a, 2)
        qconvert(a, R)
        stamp(a, 3)
        attn_loop(a, R)
        stamp(a, 4)
        epilogue(a, R)
        stamp(a, 5)
        dump_stamps(a, 6)
        a.e("s_endpgm")
    a.e("L_k1_end:")
    a.e("s_endpgm")
    lines, n = fix_hazards(a.lines, verbose=args.verbose, name="k1")
    return lines


def kernel2():
    a = Asm()
    NB = 3
    NSL = 4
    ACC = 0
    OB = 112
    WF = OB + NB * 28
    VO = WF + 32
    AT = VO + 7
    DW = AT + 4
    T = DW + 1
    SO, SW, SOUT = 4, 8, 12

    def acc(nt, ct):
        return ACC + (nt * 7 + ct) * 4

    a.e(f"""
s_cmp_ge_u32 s2, 256
s_cbranch_scc1 L_k2_end
s_load_dwordx2 s[44:45], s[0:1], 32
s_load_dwordx2 s[46:47], s[0:1], 72
s_load_dwordx2 s[48:49], s[0:1], 80
s_load_dwordx2 s[50:51], s[0:1], 96
v_lshrrev_b32 v{T}, 6, v0
v_and_b32 v{T+1}, 63, v0
s_and_b32 s20, s2, 7
s_lshr_b32 s21, s2, 3
v_readfirstlane_b32 s3, v{T}
s_lshr_b32 s22, s20, 2
s_and_b32 s23, s20, 3
s_lshl_b32 s23, s23, 2
s_lshr_b32 s24, s21, 3
s_add_u32 s23, s23, s24
s_and_b32 s24, s21, 7
s_waitcnt lgkmcnt(0)
""")
    a.e(f"""
s_cmp_eq_u32 s22, 0
s_cselect_b32 s44, s44, s46
s_cselect_b32 s45, s45, s47
s_lshl_b32 s25, s22, 4
s_add_u32 s25, s25, s23
s_mul_i32 s25, s25, {7*131072}
s_add_u32 s{SO}, s50, s25
s_addc_u32 s{SO+1}, s51, 0
s_mov_b32 s{SO+2}, {7*131072}
s_mov_b32 s{SO+3}, 0x00020000
s_lshl_b32 s25, s24, 7
s_lshl_b32 s26, s3, 20
s_add_u32 s25, s25, s26
s_add_u32 s{SW}, s44, s25
s_addc_u32 s{SW+1}, s45, 0
s_mov_b32 s{SW+2}, {1023*1024+128}
s_mov_b32 s{SW+3}, 0x00020000
s_mul_i32 s25, s23, {112*2048}
s_lshl_b32 s26, s22, 10
s_add_u32 s25, s25, s26
s_lshl_b32 s26, s24, 7
s_add_u32 s25, s25, s26
s_add_u32 s{SOUT}, s48, s25
s_addc_u32 s{SOUT+1}, s49, 0
s_mov_b32 s{SOUT+2}, {111*2048+128}
s_mov_b32 s{SOUT+3}, 0x00020000
s_lshl_b32 s27, s3, 15
s_mul_i32 s28, s3, {NSL*4096}
""")
    L = T + 1
    a.e(f"v_lshlrev_b32 v{VO}, 4, v{L}")
    a.e(f"v_add_u32 v{VO}, s27, v{VO}")
    for ct in range(1, 7):
        a.e(f"v_add_u32 v{VO+ct}, {ct*131072}, v{VO}")
    a.e(f"""
v_lshrrev_b32 v{T+2}, 3, v{L}
v_lshlrev_b32 v{DW}, 10, v{T+2}
v_and_b32 v{T+3}, 6, v{T+2}
v_and_b32 v{T+4}, 7, v{L}
v_xor_b32 v{T+3}, v{T+3}, v{T+4}
v_lshl_add_u32 v{DW}, v{T+3}, 4, v{DW}
""")
    a.e(f"""
v_lshrrev_b32 v{T+2}, 5, v{L}
v_lshlrev_b32 v{AT}, 10, v{T+2}
v_bfe_u32 v{T+2}, v{L}, 2, 3
v_lshl_add_u32 v{AT}, v{T+2}, 7, v{AT}
v_lshrrev_b32 v{T+2}, 1, v{T+2}
v_lshl_add_u32 v{AT}, v{T+2}, 5, v{AT}
v_and_b32 v{T+3}, 3, v{L}
v_lshl_add_u32 v{AT}, v{T+3}, 3, v{AT}
v_add_u32 v{AT}, s28, v{AT}
v_xor_b32 v{AT+1}, 32, v{AT}
v_xor_b32 v{AT+2}, 64, v{AT}
v_xor_b32 v{AT+3}, 96, v{AT}
""")
    vm = Q(63)
    lg = Q(15)

    def loads(st):
        out = []
        if st >= 32:
            return out
        for blk in range(4):
            out.append(([f"s_add_u32 m0, s28, {(st % NSL)*4096 + blk*1024}",
                         f"s_mov_b32 s30, {st*32768 + blk*8192}",
                         f"buffer_load_dwordx4 v{DW}, {srd(SW)}, s30 offen lds"], ("w", st)))
        first = True
        for ct in range(7):
            g = []
            if first:
                g.append(f"s_mov_b32 s31, {st*1024}")
                first = False
            g.append(f"buffer_load_dwordx4 {vr(OB+(st % NB)*28+4*ct)}, v{VO+ct}, {srd(SO)}, s31 offen")
            out.append((g, ("o", st, ct)))
        return out

    def wreads(st):
        out = []
        for nt in range(4):
            b = WF + (st & 1) * 16 + 4 * nt
            out.append(f"ds_read_b64_tr_b16 {vr(b,2)}, v{AT+nt} offset:{(st % NSL)*4096}")
            out.append(f"ds_read_b64_tr_b16 {vr(b+2,2)}, v{AT+nt} offset:{(st % NSL)*4096+2048}")
        return out

    for st in range(NB - 1):
        for g in loads(st):
            emit_group(a, g, vm)
    c = vm.count_for({("w", 0)})
    a.e(f"s_waitcnt vmcnt({c})")
    for r in wreads(0):
        a.e(r)
    for st in range(32):
        pend = loads(st + NB - 1)
        rd = wreads(st + 1) if st + 1 < 32 else []
        a.e("s_waitcnt lgkmcnt(0)")
        mi = 0
        for ct in range(7):
            c = vm.count_for({("o", st, ct)})
            if c is not None:
                a.e(f"s_waitcnt vmcnt({c})")
            for nt in range(4):
                a.e(mfma(acc(nt, ct), WF + (st & 1) * 16 + 4 * nt, OB + (st % NB) * 28 + 4 * ct, "0" if st == 0 else None))
                if mi % 2 == 0 and pend:
                    emit_group(a, pend.pop(0), vm)
                if mi == 16 and rd:
                    c = vm.count_for({("w", st + 1)})
                    if c is not None:
                        a.e(f"s_waitcnt vmcnt({c})")
                if mi >= 16 and rd:
                    a.e(rd.pop(0))
                mi += 1
        assert not pend and not rd
    a.e("s_barrier")
    a.e(f"v_lshlrev_b32 v{T+2}, 4, v{L}")
    a.e(f"s_mul_i32 s29, s3, 7168")
    a.e(f"v_add_u32 v{T+3}, s29, v{T+2}")
    a.e(f"v_add_u32 v{T+5}, {2*28672}, v{T+3}")
    a.e(f"s_mul_i32 s29, s3, 28672")
    a.e(f"v_add_u32 v{T+4}, s29, v{T+2}")
    for nt in range(4):
        for ct in range(7):
            base = T + 3 if nt < 2 else T + 5
            a.e(f"ds_write_b128 v{base}, {vr(acc(nt, ct))} offset:{(nt & 1)*28672 + ct*1024}")
    a.e("s_waitcnt lgkmcnt(0)")
    a.e("s_barrier")
    for ct in range(7):
        for s in range(4):
            a.e(f"ds_read_b128 {vr((ct*4+s)*4)}, v{T+4} offset:{s*7168 + ct*1024}")
    a.e(f"""
v_and_b32 v{T+2}, 15, v{L}
v_lshlrev_b32 v{T+2}, 11, v{T+2}
v_lshrrev_b32 v{T+3}, 4, v{L}
v_lshl_add_u32 v{T+2}, v{T+3}, 3, v{T+2}
s_lshl_b32 s29, s3, 5
v_add_u32 v{T+2}, s29, v{T+2}
s_waitcnt lgkmcnt(0)
""")
    for ct in range(7):
        b = ct * 16
        for i in range(0, 4, 2):
            a.e(f"v_pk_add_f32 {vr(b+i,2)}, {vr(b+i,2)}, {vr(b+4+i,2)}")
            a.e(f"v_pk_add_f32 {vr(b+8+i,2)}, {vr(b+8+i,2)}, {vr(b+12+i,2)}")
            a.e(f"v_pk_add_f32 {vr(b+i,2)}, {vr(b+i,2)}, {vr(b+8+i,2)}")
        a.e(f"v_cvt_pk_bf16_f32 v{b}, v{b}, v{b+1}")
        a.e(f"v_cvt_pk_bf16_f32 v{b+1}, v{b+2}, v{b+3}")
        a.e(f"s_mov_b32 s29, {ct*16*2048}")
        a.e(f"buffer_store_dwordx2 {vr(b,2)}, v{T+2}, {srd(SOUT)}, s29 offen")
    a.e("L_k2_end:")
    a.e("s_endpgm")
    lines, n = fix_hazards(a.lines, verbose=args.verbose, name="k2")
    return lines, T + 6


def kd(name, nv, ns=102):
    acc = (nv + 3) // 4 * 4
    return f""".amdhsa_kernel {name}
  .amdhsa_next_free_vgpr {nv}
  .amdhsa_next_free_sgpr {ns}
  .amdhsa_accum_offset {acc}
  .amdhsa_group_segment_fixed_size 0
  .amdhsa_kernarg_size 104
  .amdhsa_user_sgpr_count 2
  .amdhsa_user_sgpr_kernarg_segment_ptr 1
  .amdhsa_system_sgpr_workgroup_id_x 1
.end_amdhsa_kernel
"""


def main():
    k1 = kernel1()
    k2, nv2 = kernel2()
    out = [HEADER.rstrip()]
    out.append(f"; @launch kernel={K1} grid=(256,1,1) block=(512,1,1) lds=163840")
    if not args.only1:
        out.append(f"; @launch kernel={K2} grid=(256,1,1) block=(256,1,1) lds=114688")
    out.append('.amdgcn_target "amdgcn-amd-amdhsa--gfx950"\n.text')
    for name, body in ((K1, k1), (K2, k2)):
        out.append(f".globl {name}\n.p2align 8\n.type {name},@function\n{name}:")
        out += ["    " + l if not l.endswith(":") else l for l in body if l]
    out.append('.section .rodata,"a"\n.p2align 6')
    out.append(kd(K1, 256))
    out.append(".p2align 6")
    out.append(kd(K2, nv2))
    open(args.o, "w").write("\n".join(out) + "\n")


if __name__ == "__main__":
    ap = argparse.ArgumentParser()
    ap.add_argument("-o", default="concat_heads__mha_block_cached__gqa_block_cached__near_ridge.s")
    ap.add_argument("--verbose", action="store_true")
    ap.add_argument("--only1", action="store_true")
    ap.add_argument("--opt", action="append", default=[])
    args = ap.parse_args()
    for o in args.opt:
        k, v = o.split("=")
        setattr(O, k, type(getattr(O, k))(int(v)))
    main()
```
